```python
import torch

def _softmax(x, axis=-1):
    return torch.softmax(x, dim=axis)
def _gelu(x):
    return torch.nn.functional.gelu(x, approximate="tanh")
def _silu(x):
    return torch.nn.functional.silu(x)
def _sigmoid(x):
    return torch.sigmoid(x)
def _layernorm(x, axis=-1, eps=1e-5):
    m = x.mean(dim=axis, keepdim=True)
    v = x.var(dim=axis, keepdim=True, unbiased=False)
    return (x - m) / torch.sqrt(v + eps)
def _scatter_add(tgt, idx, src, axis=0):
    return tgt.clone().index_add_(axis, idx, src)
def _segment_sum(src, seg, n):
    out = torch.zeros((n,) + src.shape[1:], dtype=src.dtype)
    return out.index_add_(0, seg, src)
def _pad(x, pw):
    flat = tuple(v for pair in reversed(pw) for v in pair)
    return torch.nn.functional.pad(x, flat)

kernel_name = 'standalone__weight_only_int_squeezellm__prompt'

def setup_inputs():

    _w = (lambda a: (lambda t: t.to(torch.bfloat16) if t.is_floating_point() else t)(torch.as_tensor(a)))
    B, S, D, F = 1, 2048, 576, 4608
    bits = 8 if (2 <= 8 <= 4) else 4
    L = 2 ** bits
    qw = torch.randint(0, L, (D, F)).to(torch.int64)
    lut = (lambda *s: torch.randn(*s, dtype=torch.bfloat16) * 0.05)(L, F)
    return {
        "x": _w((lambda *s: torch.randn(*s, dtype=torch.bfloat16) * 0.05)(B, S, D)),
        "qw": _w(qw),
        "lut": _w(lut),
    }

def reference(x, qw, lut):
    w = (lambda x, i, axis: torch.take_along_dim(x, i, dim=axis))(lut, qw, axis=0)
    w = (lambda x, dt: x.to(dt))(w, x.dtype)
    return torch.einsum('bsd,df->bsf', x, w)
```

```python
import sys
NAME = "standalone__weight_only_int_squeezellm__prompt"
M, K, N = 2048, 576, 4608
BM, BN = 256, 144
KS = K // 32
LUT_BYTES = 9 * 2048
WBASE = LUT_BYTES
WSLOT = 9216

def gen(opt):
    NSLOT = opt.get('nslot', 4)
    QD = opt.get('qd', 6)
    store_flags = opt.get('store_flags', '')
    cprio = opt.get('cprio', 0)
    pprio = opt.get('pprio', 0)
    barct = opt.get('barct', 5)
    LDS = WBASE + NSLOT * WSLOT
    o = []
    e = o.append
    e(f"; @launch grid=(256,1,1) block=(448,1,1) lds={LDS}")
    e('.amdgcn_target "amdgcn-amd-amdhsa--gfx950"')
    e(".text")
    e(f".globl {NAME}_kernel")
    e(".p2align 8")
    e(f".type {NAME}_kernel,@function")
    e(f"{NAME}_kernel:")
    e("  s_cmp_ge_u32 s2, 256")
    e("  s_cbranch_scc1 L_end")
    e("  s_load_dwordx4 s[4:7], s[0:1], 0")
    e("  s_load_dwordx4 s[8:11], s[0:1], 16")
    e("  v_lshrrev_b32 v1, 6, v0")
    e("  v_and_b32 v2, 63, v0")
    e("  v_readfirstlane_b32 s3, v1")
    e("  s_and_b32 s12, s2, 7")
    e("  s_lshr_b32 s13, s2, 3")
    e("  s_and_b32 s14, s13, 3")
    e("  s_lshl_b32 s12, s12, 2")
    e("  s_add_u32 s12, s12, s14")
    e("  s_lshr_b32 s13, s13, 2")
    e("  s_mul_i32 s14, s12, 144")
    e("  s_lshl_b32 s15, s13, 8")
    e("  v_lshrrev_b32 v3, 4, v2")
    e("  v_and_b32 v4, 15, v2")
    e("  s_waitcnt lgkmcnt(0)")
    for (d, b, sz) in ((16, 4, M*K*2), (20, 6, K*N*4), (24, 8, 16*N*2), (28, 10, M*N*2)):
        e(f"  s_mov_b32 s{d}, s{b}")
        e(f"  s_and_b32 s{d+1}, s{b+1}, 0xffff")
        e(f"  s_mov_b32 s{d+2}, {sz}")
        e(f"  s_mov_b32 s{d+3}, 0x00020000")
    e("  s_cmp_ge_u32 s3, 4")
    e("  s_cbranch_scc1 L_producer")

    XR = 16; WR = 96; ACC = 112
    def xreg(ks, rt): return XR + (ks % 5) * 16 + rt * 4
    def wreg(i): return WR + (i % 4) * 4
    def acc(rt, ct): return ACC + (ct * 4 + rt) * 4
    if cprio: e(f"  s_setprio {cprio}")
    e("  v_lshrrev_b32 v5, 4, v0")
    e("  s_movk_i32 s32, 9216")
    e("  v_mul_lo_u32 v6, v5, s32")
    e("  v_mul_u32_u24 v7, 6, v4")
    e("  s_lshl_b32 s33, s14, 1")
    e("  v_add3_u32 v6, v6, v7, s33")
    for pt in range(9):
        p, t = divmod(pt, 3)
        e(f"  buffer_load_ushort v{WR+pt}, v6, s[24:27], 0 offen offset:{96*p+2*t}")
    e("  s_lshl_b32 s34, s3, 6")
    e("  s_add_u32 s34, s34, s15")
    e("  v_add_u32 v8, s34, v4")
    e("  s_movk_i32 s32, 1152")
    e("  v_mul_lo_u32 v8, v8, s32")
    e("  v_lshl_add_u32 v8, v3, 4, v8")
    e("  s_mov_b32 s36, 0")
    e("  s_mov_b32 s37, 18432")
    e("  s_mov_b32 s38, 36864")
    e("  s_mov_b32 s39, 55296")
    def xload(ks, rt):
        r = xreg(ks, rt)
        return f"  buffer_load_dwordx4 v[{r}:{r+3}], v8, s[16:19], s{36+rt} offen offset:{ks*64}"
    for pair in range(2):
        for rt in range(4):
            for ks in (2*pair, 2*pair+1):
                e(xload(ks, rt))
    e("  v_lshlrev_b32 v9, 7, v5")
    e("  v_lshl_add_u32 v9, v4, 2, v9")
    e(f"  v_lshlrev_b32 v10, 4, v2")
    e(f"  v_add_u32 v10, {WBASE}, v10")
    for r in range(ACC, ACC+144):
        e(f"  v_mov_b32 v{r}, 0")
    for pt in range(9):
        e(f"  s_waitcnt vmcnt({16 + 8 - pt})")
        e(f"  ds_write_b32 v9, v{WR+pt} offset:{pt*2048}")
        e(f"  ds_write_b32 v9, v{WR+pt} offset:{pt*2048+64}")
    e("  s_waitcnt lgkmcnt(0)")
    e("  s_barrier")
    e("  s_barrier")
    NF = KS * 9
    def wread(f):
        ks, ct = divmod(f, 9)
        r = wreg(f)
        return f"  ds_read_b128 v[{r}:{r+3}], v10 offset:{(ks % NSLOT)*WSLOT + ct*1024}"
    PF = 3
    for f in range(PF): e(wread(f))
    issued = []
    for pair in range(2):
        for rt in range(4):
            for ks in (2*pair, 2*pair+1):
                issued.append(ks)
    pending = []
    for ks in range(KS):
        last = max(i for i, k in enumerate(issued) if k == ks)
        e(f"  s_waitcnt vmcnt({len(issued)-1-last})")
        if ks % 2 == 1 and ks + 3 < KS:
            pending = [(k, rt) for rt in range(4) for k in (ks+3, ks+4)]
        for ct in range(9):
            f = ks*9 + ct
            if ct == barct and ks + 1 < KS:
                e("  s_barrier")
            assert barct <= 9 - PF
            nout = min(PF, NF - 1 - f) if f + PF < NF else NF - 1 - f
            if f + PF < NF:
                e(wread(f + PF))
                e(f"  s_waitcnt lgkmcnt({PF})")
            else:
                e(f"  s_waitcnt lgkmcnt({NF-1-f})")
            for rt in range(4):
                a = acc(rt, ct); w = wreg(f); x = xreg(ks, rt)
                e(f"  v_mfma_f32_16x16x32_bf16 v[{a}:{a+3}], v[{w}:{w+3}], v[{x}:{x+3}], v[{a}:{a+3}]")
                if rt == 1 and pending:
                    k, r = pending.pop(0)
                    e(xload(k, r)); issued.append(k)
        assert not pending
    e("  v_add_u32 v8, s34, v4")
    e("  s_movk_i32 s32, 9216")
    e("  v_mul_lo_u32 v8, v8, s32")
    e("  v_add_u32 v8, s33, v8")
    e("  v_lshl_add_u32 v11, v3, 3, v8")
    e("  v_lshl_add_u32 v8, v3, 4, v8")
    e("  s_mov_b32 s37, 147456")
    e("  s_mov_b32 s38, 294912")
    e("  s_mov_b32 s39, 442368")
    e("  s_nop 7")
    tmp = 16
    for B in range(4):
        for rt in range(4):
            a0 = acc(rt, 2*B); a1 = acc(rt, 2*B+1)
            e(f"  v_cvt_pk_bf16_f32 v{tmp}, v{a0}, v{a0+1}")
            e(f"  v_cvt_pk_bf16_f32 v{tmp+1}, v{a0+2}, v{a0+3}")
            e(f"  v_cvt_pk_bf16_f32 v{tmp+2}, v{a1}, v{a1+1}")
            e(f"  v_cvt_pk_bf16_f32 v{tmp+3}, v{a1+2}, v{a1+3}")
            e(f"  buffer_store_dwordx4 v[{tmp}:{tmp+3}], v8, s[28:31], s{36+rt} offen offset:{B*64} {store_flags}")
            tmp += 4
    for rt in range(4):
        a0 = acc(rt, 8)
        e(f"  v_cvt_pk_bf16_f32 v{tmp}, v{a0}, v{a0+1}")
        e(f"  v_cvt_pk_bf16_f32 v{tmp+1}, v{a0+2}, v{a0+3}")
        e(f"  buffer_store_dwordx2 v[{tmp}:{tmp+1}], v11, s[28:31], s{36+rt} offen offset:256 {store_flags}")
        tmp += 2
    e("  s_endpgm")

    e("L_producer:")
    if pprio: e(f"  s_setprio {pprio}")
    QR = 16; RES = QR + QD*32; PK = RES + 24
    assert PK + 12 <= 256
    def qreg(ks, j): return QR + (ks % QD)*32 + j*4
    e("  s_sub_u32 s3, s3, 4")
    e("  s_mul_i32 s32, s3, 48")
    e("  s_add_u32 s33, s32, s14")
    e("  v_mul_u32_u24 v5, 3, v4")
    e("  v_add_u32 v6, s33, v5")
    e("  v_lshlrev_b32 v6, 2, v6")
    e("  s_mov_b32 s34, 147456")
    e("  v_mul_lo_u32 v7, v3, s34")
    e("  v_add_u32 v6, v6, v7")
    e("  s_mov_b32 s35, 0")
    def qload(ks, j):
        r = qreg(ks, j)
        return [f"  s_mov_b32 s35, {(32*ks+j)*18432}",
                f"  buffer_load_dwordx3 v[{r}:{r+2}], v6, s[20:23], s35 offen"]
    for ks in range(QD):
        for j in range(8):
            for l in qload(ks, j): e(l)
    e("  v_and_b32 v7, 31, v2")
    e("  v_lshlrev_b32 v7, 2, v7")
    e("  s_mul_i32 s36, s3, 6144")
    e("  v_add_u32 v7, s36, v7")
    for t in range(3):
        d = 8 + t
        e(f"  v_add_u32 v11, s32, v5")
        if t: e(f"  v_add_u32 v11, {t}, v11")
        e("  v_lshrrev_b32 v12, 5, v11")
        e("  v_lshlrev_b32 v12, 1, v12")
        e("  v_bfe_u32 v13, v11, 2, 1")
        e("  v_add_u32 v12, v12, v13")
        e("  v_bfe_u32 v13, v11, 3, 2")
        e("  v_and_b32 v14, 3, v11")
        e("  v_lshl_add_u32 v13, v13, 2, v14")
        e("  v_subrev_u32 v14, 128, v11")
        e("  v_cmp_lt_u32 vcc, v11, v15") if False else None
        e("  v_cmp_gt_u32 vcc, 128, v11")
        e("  s_nop 1")
        e("  v_cndmask_b32 v12, 8, v12, vcc")
        e("  v_cndmask_b32 v13, v14, v13, vcc")
        e("  v_lshl_add_u32 v13, v3, 4, v13")
        e("  v_lshlrev_b32 v13, 4, v13")
        e(f"  v_lshl_add_u32 v{d}, v12, 10, v13")
        e(f"  v_add_u32 v{d}, {WBASE}, v{d}")
    e("  s_barrier")
    for ks in range(KS):
        nlater = min(QD - 1, KS - 1 - ks) * 8
        e(f"  s_waitcnt vmcnt({nlater})")
        for t in range(3):
            for j in range(8):
                r = qreg(ks, j) + t
                e(f"  v_lshl_add_u32 v{r}, v{r}, 7, v7")
                e(f"  ds_read_u16 v{RES + t*8 + j}, v{r} offset:{t*2048}")
        if ks + QD < KS:
            for j in range(8):
                for l in qload(ks + QD, j): e(l)
        for t in range(3):
            e(f"  s_waitcnt lgkmcnt({min(15, (2-t)*8 + t)})")
            for jj in range(4):
                lo = RES + t*8 + 2*jj
                e(f"  v_lshl_or_b32 v{PK + t*4 + jj}, v{lo+1}, 16, v{lo}")
            e(f"  ds_write_b128 v{8+t}, v[{PK+t*4}:{PK+t*4+3}] offset:{(ks % NSLOT)*WSLOT}")
        e("  s_waitcnt lgkmcnt(0)")
        e("  s_barrier")
    e("L_end:")
    e("  s_endpgm")
    e('.section .rodata,"a"')
    e(".p2align 6")
    e(f".amdhsa_kernel {NAME}_kernel")
    e("  .amdhsa_next_free_vgpr 256")
    e("  .amdhsa_next_free_sgpr 48")
    e("  .amdhsa_accum_offset 256")
    e("  .amdhsa_group_segment_fixed_size 0")
    e("  .amdhsa_kernarg_size 48")
    e("  .amdhsa_user_sgpr_count 2")
    e("  .amdhsa_user_sgpr_kernarg_segment_ptr 1")
    e("  .amdhsa_system_sgpr_workgroup_id_x 1")
    e(".end_amdhsa_kernel")
    return "\n".join(x for x in o if x is not None) + "\n"

if __name__ == "__main__":
    out = sys.argv[1]
    opt = {}
    for a in sys.argv[2:]:
        k, v = a.split("=")
        try: v = int(v)
        except ValueError: pass
        opt[k] = v
    open(out, "w").write(gen(opt))
```

```python
import sys
NAME = "standalone__weight_only_int_squeezellm__prompt"
M, K, N = 2048, 576, 4608
KS = 18; NCH = 9
WBASE = 8192
WK = 9216
WSLOT = 2 * WK
NSLOT = 3
XB = WBASE + NSLOT * WSLOT
XW = 24576
LDS = XB + 4 * XW

def gen(opt):
    QD = opt.get('qd', 3); LQ = opt.get('lq', 2); XC = opt.get('xc', 0)
    assert LQ < QD
    sf = opt.get('store_flags', '').replace('+', ' ')
    qf = opt.get('q_flags', '').replace('+', ' ')
    cprio = opt.get('cprio', 0); pprio = opt.get('pprio', 0)
    PF = opt.get('pf', 5)
    TAIL = opt.get('tail', 0)
    o = []; e = o.append
    STAMP = opt.get('stamp', 0); nst = [0]
    def stamp():
        if not STAMP: return
        e("  s_memrealtime s[44:45]"); e("  s_memtime s[64:65]"); e("  s_waitcnt lgkmcnt(0)")
        e(f"  v_writelane_b32 v18, s64, {16+nst[0]}")
        e(f"  v_writelane_b32 v18, s44, {nst[0]}"); nst[0] += 1
    def dump():
        if not STAMP: return
        e("  s_waitcnt vmcnt(0)"); stamp()
        for l in ("s_load_dwordx2 s[36:37], s[0:1], 40", "s_waitcnt lgkmcnt(0)", "s_and_b32 s37, s37, 0xffff",
                  "s_mov_b32 s38, 0x100000", "s_mov_b32 s39, 0x00020000", "s_lshl_b32 s46, s2, 3", "s_add_u32 s46, s46, s47",
                  "s_lshl_b32 s46, s46, 7", "v_and_b32 v19, 63, v0", "v_lshlrev_b32 v19, 2, v19", "v_cmp_gt_u32 vcc, 128, v19",
                  "s_and_saveexec_b64 s[44:45], vcc", "buffer_store_dword v18, v19, s[36:39], s46 offen", "s_waitcnt vmcnt(0)"): e("  " + l)
        nst[0] = 2
    e(f"; @launch grid=(256,1,1) block=(512,1,1) lds={LDS}")
    e('.amdgcn_target "amdgcn-amd-amdhsa--gfx950"')
    e(".text"); e(f".globl {NAME}_kernel"); e(".p2align 8")
    e(f".type {NAME}_kernel,@function"); e(f"{NAME}_kernel:")
    e("  s_cmp_ge_u32 s2, 256")
    e("  s_cbranch_scc1 L_end")
    stamp()
    e("  s_load_dwordx4 s[4:7], s[0:1], 0")
    e("  s_load_dwordx4 s[8:11], s[0:1], 16")
    e("  v_lshrrev_b32 v1, 6, v0")
    e("  v_and_b32 v2, 63, v0")
    e("  v_readfirstlane_b32 s3, v1")
    e("  s_and_b32 s12, s2, 7")
    e("  s_lshr_b32 s13, s2, 3")
    e("  s_and_b32 s14, s13, 3")
    e("  s_lshl_b32 s12, s12, 2")
    e("  s_add_u32 s12, s12, s14")
    e("  s_lshr_b32 s13, s13, 2")
    e("  s_mul_i32 s14, s12, 144")
    e("  s_lshl_b32 s15, s13, 8")
    e("  v_lshrrev_b32 v3, 4, v2")
    e("  v_and_b32 v4, 15, v2")
    e("  s_and_b32 s40, s3, 3")
    e("  s_lshl_b32 s34, s40, 6")
    e("  s_add_u32 s34, s34, s15")
    e("  s_mul_i32 s41, s34, 1152")
    e(f"  s_mul_i32 s40, s40, {XW}")
    e(f"  s_add_u32 s40, s40, {XB}")
    e("  v_lshrrev_b32 v12, 3, v2")
    e("  s_movk_i32 s32, 1152")
    e("  v_mul_lo_u32 v12, v12, s32")
    e("  v_add_u32 v12, s41, v12")
    e("  v_and_b32 v13, 7, v2")
    e("  v_xor_b32 v13, v13, v3")
    e("  v_lshl_add_u32 v14, v13, 4, v12")
    e("  v_xor_b32 v13, 4, v13")
    e("  v_lshl_add_u32 v15, v13, 4, v12")
    e("  s_waitcnt lgkmcnt(0)")
    for (d, b, sz) in ((16, 4, M*K*2), (20, 6, K*N*4), (24, 8, 16*N*2), (28, 10, M*N*2)):
        e(f"  s_mov_b32 s{d}, s{b}")
        e(f"  s_and_b32 s{d+1}, s{b+1}, 0xffff")
        e(f"  s_mov_b32 s{d+2}, {sz}")
        e(f"  s_mov_b32 s{d+3}, 0x00020000")
    for i in range(8): e(f"  s_mov_b32 s{56+i}, {i*9216 - (i%4)*1024}")
    def xdma(c, i):
        r = []
        if i % 4 == 0: r += [f"  s_add_u32 m0, s40, {(c%3)*8192 + i*1024}", "  s_nop 0"]
        r.append(f"  buffer_load_dwordx4 v{14 + i%2}, s[16:19], s{56+i} offen offset:{(i%4)*1024} lds")
        if i == 7: r += ["  v_add_u32 v14, 128, v14", "  v_add_u32 v15, 128, v15"]
        return r
    e("  s_mov_b32 s47, s3")
    stamp()
    e("  s_cmp_ge_u32 s3, 4")
    e("  s_cbranch_scc1 L_producer")

    XR = 20; WR = 80; ACC = 112; NW = 8
    assert PF < NW
    def acc(rt, ct): return ACC + (ct * 4 + rt) * 4
    if cprio: e(f"  s_setprio {cprio}")
    e("  v_lshrrev_b32 v5, 4, v0")
    e("  s_movk_i32 s32, 9216")
    e("  v_mul_lo_u32 v6, v5, s32")
    e("  s_lshl_b32 s33, s14, 1")
    e("  v_add_u32 v6, s33, v6")
    e("  v_and_b32 v7, 1, v4")
    e("  v_lshl_add_u32 v7, v7, 4, v6")
    e("  v_lshl_add_u32 v6, v4, 4, v6")
    e(f"  buffer_load_dwordx4 v[{WR}:{WR+3}], v6, s[24:27], 0 offen")
    e(f"  buffer_load_dwordx4 v[{WR+4}:{WR+7}], v7, s[24:27], 0 offen offset:256")
    for c in range(2):
        for i in range(8):
            for l in xdma(c, i): e(l)
    e("  v_lshlrev_b32 v9, 7, v5")
    e("  v_lshl_add_u32 v9, v4, 3, v9")
    e("  v_lshlrev_b32 v10, 4, v2")
    e(f"  v_add_u32 v10, {WBASE}, v10")
    e("  v_xor_b32 v11, 64, v10")
    e("  v_lshrrev_b32 v12, 1, v4")
    e("  v_xor_b32 v12, v12, v3")
    e("  v_lshlrev_b32 v12, 4, v12")
    e("  v_lshl_add_u32 v12, v4, 7, v12")
    if opt.get('xlin'): e("  v_lshlrev_b32 v12, 4, v2")
    if not opt.get('xlow'): e("  v_add_u32 v12, s40, v12")
    e("  v_xor_b32 v13, 64, v12")
    e("  v_lshl_add_u32 v6, v3, 2, s34")
    e("  v_mul_lo_u32 v6, v6, s32")
    e("  v_add_u32 v6, s33, v6")
    e("  v_lshl_add_u32 v6, v4, 4, v6")
    e("  v_add_u32 v7, s34, v4")
    e("  v_mul_lo_u32 v7, v7, s32")
    e("  v_add_u32 v7, s33, v7")
    e("  v_lshl_add_u32 v7, v3, 3, v7")
    stamp()
    e("  s_waitcnt vmcnt(16)")
    stamp()
    for tb in range(2):
        b = WR + 4*tb
        e(f"  ds_write_b32 v9, v{b} offset:{tb*4096}")
        e(f"  ds_write_b32 v9, v{b+2} offset:{tb*4096+4}")
        e(f"  ds_write_b32 v9, v{b+1} offset:{tb*4096+2048}")
        e(f"  ds_write_b32 v9, v{b+3} offset:{tb*4096+2048+4}")
    e("  s_waitcnt lgkmcnt(0)")
    e("  s_barrier")
    stamp()
    groups = []
    ksn = KS - 2*TAIL
    for ks in range(ksn):
        for ct in range(9): groups.append((ks, ct, (0,1,2,3)))
    for half in ((0,1),(2,3)):
        for ks in range(ksn, KS):
            for ct in range(9): groups.append((ks, ct, half))
    NG = len(groups)
    xalloc = {}; xorder = []
    for gi, (ks, ct, rts) in enumerate(groups):
        for rt in rts:
            if (ks, rt) not in xalloc:
                xalloc[(ks, rt)] = XR + (len(xorder) % 12) * 4; xorder.append((gi, ks, rt))
    def wread(gi):
        ks, ct, _ = groups[gi]; r = WR + (gi % NW) * 4
        a = 11 if 4 <= ct < 8 else 10
        return f"  ds_read_b128 v[{r}:{r+3}], v{a} offset:{((ks//2) % NSLOT)*WSLOT + (ks%2)*WK + ct*1024}"
    def xread(ks, rt):
        r = xalloc[(ks, rt)]
        return f"  ds_read_b128 v[{r}:{r+3}], v{12 + ks%2} offset:{((ks//2)%3)*8192 + rt*2048}"
    plan = {g: [] for g in range(-PF, NG)}
    for gi in range(NG): plan[gi-PF].append(('w', gi))
    cnt = {}
    for (gi, ks, rt) in xorder:
        j = cnt.get(gi, 0); cnt[gi] = j + 1
        plan[gi - PF + min(j, PF-2) if gi >= PF else -PF].append(('x', ks, rt))
    issued = []; barrier_done = 0; stored = set()
    tmpc = [0]
    def chunk_of(it): return (groups[it[1]][0] if it[0] == 'w' else it[1]) // 2
    def do_issue(pos):
        nonlocal barrier_done
        for it in plan[pos]:
            c = chunk_of(it)
            while barrier_done <= c:
                if XC: e(f"  s_waitcnt vmcnt({8 if barrier_done + 1 < NCH else 0})")
                elif barrier_done < 2: e(f"  s_waitcnt vmcnt({8 - 8*barrier_done})")
                e("  s_barrier"); barrier_done += 1
                if barrier_done in (1, 2, 5): stamp()
            if not opt.get('nords') and opt.get('nord') != it[0]: e(wread(it[1]) if it[0] == 'w' else xread(it[1], it[2]))
            issued.append(it)
    store_q = []
    def store_items(rts):
        its = []
        for rt in rts:
            for r in range(4): its.append(('m', rt, r))
            its.append(('t', rt, 0))
        return its
    def emit_store(it, tmp):
        kind, rt, r = it
        if kind == 'm':
            for p in range(4):
                e(f"  v_cvt_pk_bf16_f32 v{tmp+p}, v{acc(rt,2*p)+r}, v{acc(rt,2*p+1)+r}")
            e(f"  s_mov_b32 s36, {(16*rt + r)*9216}")
            if not opt.get('nostore'): e(f"  buffer_store_dwordx4 v[{tmp}:{tmp+3}], v6, s[28:31], s36 offen {sf}")
        else:
            a0 = acc(rt, 8)
            e(f"  v_cvt_pk_bf16_f32 v{tmp}, v{a0}, v{a0+1}")
            e(f"  v_cvt_pk_bf16_f32 v{tmp+1}, v{a0+2}, v{a0+3}")
            e(f"  s_mov_b32 s36, {16*rt*9216}")
            if not opt.get('nostore'): e(f"  buffer_store_dwordx2 v[{tmp}:{tmp+1}], v7, s[28:31], s36 offen offset:256 {sf}")
    for pos in range(-PF, 0): do_issue(pos)
    first_h2 = ksn*9 + 2*TAIL*9 if TAIL else None
    for gi, (ks, ct, rts) in enumerate(groups):
        need = [('w', gi)] + [('x', ks, rt) for rt in rts]
        last = max(issued.index(n) for n in need)
        n_after = len(issued) - 1 - last
        assert n_after <= 15
        e(f"  s_waitcnt lgkmcnt({n_after})")
        w = WR + (gi % NW) * 4
        pl = plan[gi]
        for ri, rt in enumerate(rts):
            a = acc(rt, ct); x = xalloc[(ks, rt)]
            cin = "0" if ks == 0 else f"v[{a}:{a+3}]"
            A, B = (x, w) if ct < 8 else (w, x)
            if opt.get('m32') and ct < 8:
                if ri < 2:
                    a = ACC + (2*(ct%4) + ri)*16; x = xalloc[(ks, ri + 2*(ct//4))]
                    cin = "0" if (ks == 0 and ct < 4) else f"v[{a}:{a+15}]"
                    e(f"  v_mfma_f32_32x32x16_bf16 v[{a}:{a+15}], v[{x}:{x+3}], v[{w}:{w+3}], {cin}")
                if ri == 2 and ct < 4 and opt.get('m32') == 2: e(f"  ds_read_b128 v[{68+0}:{68+3}], v12 offset:{ct*2048}"); issued.append(('z', ks, ct))
            elif not opt.get('nomfma'):
                e(f"  v_mfma_f32_16x16x32_bf16 v[{a}:{a+3}], v[{A}:{A+3}], v[{B}:{B+3}], {cin}")
            plan[gi] = pl[ri:ri+1] if ri + 1 < len(rts) else pl[ri:]
            do_issue(gi)
        if XC and ks // 2 + 2 < NCH and gi % 18 < 13 and (gi % 18) % 3 != 2 and gi % 18 != 12:
            xi = (gi % 18) - (gi % 18) // 3
            for l in xdma(ks // 2 + 2, xi): e(l)
        if TAIL and gi == first_h2 + 1: store_q = store_items((0, 1))
        if store_q and gi % 2 == 0:
            it = store_q.pop(0)
            kind, rt, r = it
            emit_store(it, 4 * 0 + (acc(rt, 8) if kind == 't' else STG[tmpc[0]])); tmpc[0] += (kind == 'm')
    e("  s_nop 7"); e("  s_nop 7"); e("  s_nop 3"); stamp()
    rest = store_q + store_items((2, 3) if TAIL else (0, 1, 2, 3))
    tmp = 20
    for it in rest:
        emit_store(it, tmp); tmp += 4
        assert tmp <= 112
    stamp(); dump()
    e("  s_endpgm")

    e("L_producer:")
    if opt.get('noprod'): e("  s_endpgm")
    if pprio: e(f"  s_setprio {pprio}")
    QR = 20; RES = QR + QD*36; PK = RES + 36
    assert PK + 16 <= 256
    def qreg(c, j): return QR + (c % QD)*36 + j*4
    e("  s_sub_u32 s3, s3, 4")
    e("  v_lshrrev_b32 v5, 5, v2")
    e("  v_and_b32 v6, 31, v2")
    e("  s_lshl_b32 s32, s3, 1")
    e("  v_add_u32 v7, s32, v5")
    e("  s_mov_b32 s34, 147456")
    e("  v_mul_lo_u32 v8, v7, s34")
    e("  s_lshl_b32 s33, s14, 2")
    e("  v_lshl_add_u32 v8, v6, 4, v8")
    e("  v_add_u32 v8, s33, v8")
    e("  v_lshrrev_b32 v9, 2, v2")
    e("  s_lshl_b32 s35, s3, 4")
    e("  v_add_u32 v9, s35, v9")
    e("  s_movk_i32 s34, 18432")
    e("  v_mul_lo_u32 v10, v9, s34")
    e("  v_and_b32 v11, 3, v2")
    e("  v_lshl_add_u32 v10, v11, 4, v10")
    e("  v_add_u32 v10, s33, v10")
    vm = []
    for j in range(8): e(f"  s_mov_b32 s{48+j}, {j*18432}")
    def qload(c, j):
        r = qreg(c, j); vm.append(('q', c))
        if j == 8:
            return [f"  buffer_load_dwordx4 v[{r}:{r+3}], v10, s[20:23], 0 offen offset:512 {qf}",
                    f"  v_add_u32 v8, {64*18432}, v8", f"  v_add_u32 v10, {64*18432}, v10"]
        return [f"  buffer_load_dwordx4 v[{r}:{r+3}], v8, s[20:23], s{48+j} offen {qf}"]
    def vwait(key):
        if key not in vm: return
        last = max(i for i, k in enumerate(vm) if k == key)
        e(f"  s_waitcnt vmcnt({min(63, len(vm)-1-last)})")
    for c in range(LQ):
        for j in range(9):
            for l in qload(c, j): e(l)
    stamp()
    e("  v_lshlrev_b32 v12, 2, v6")
    e("  v_and_b32 v1, 1, v6")
    e("  v_lshrrev_b32 v13, 1, v6")
    e("  v_lshlrev_b32 v16, 2, v1")
    e("  v_xor_b32 v13, v13, v16")
    e("  v_lshlrev_b32 v13, 4, v13")
    e("  v_lshl_add_u32 v13, v1, 12, v13")
    e("  v_lshrrev_b32 v1, 2, v7")
    e(f"  s_movk_i32 s34, {WK}")
    e("  v_mul_lo_u32 v1, v1, s34")
    e("  v_add_u32 v13, v13, v1")
    e("  v_and_b32 v1, 3, v7")
    e("  v_lshl_add_u32 v13, v1, 8, v13")
    e(f"  v_add_u32 v16, {WBASE}, v13")
    e("  v_lshrrev_b32 v1, 5, v9")
    e("  v_mul_lo_u32 v1, v1, s34")
    e(f"  v_add_u32 v13, {WBASE + 8192}, v1")
    e("  v_bfe_u32 v1, v9, 3, 2")
    e("  v_lshl_add_u32 v13, v1, 8, v13")
    e("  v_lshl_add_u32 v13, v11, 6, v13")
    e("  v_and_b32 v1, 7, v9")
    e("  v_lshl_add_u32 v17, v1, 1, v13")
    stamp()
    e("  s_barrier")
    stamp()
    if not XC: e("  v_add_u32 v14, 256, v14"); e("  v_add_u32 v15, 256, v15")
    D16 = opt.get('d16', 0); PST = (3, 4)
    for c in range(-1, NCH):
        so = (c % NSLOT) * WSLOT
        vq = []
        if not XC and c >= 1 and c + 1 < NCH: vq += [('x', c + 1, i) for i in range(8)]
        if c + 1 + LQ < NCH: vq += [('q', c + 1 + LQ, j) for j in range(9)]
        def vissue(n):
            for _ in range(n):
                if not vq: return
                k, cc, i = vq.pop(0)
                if k == 'x':
                    for l in xdma(cc, i): e(l)
                    vm.append(('x', cc))
                else:
                    for l in qload(cc, i): e(l)
        early = c >= 0 and c < opt.get('early', 1)
        def bar():
            vwait(('x', c))
            if c in PST: stamp()
            e("  s_barrier")
            if c in PST: stamp()
        def pack(t):
            for jj in range(4):
                lo = RES + t*9 + 2*jj
                e(f"  v_lshl_or_b32 v{PK + t*4 + jj}, v{lo+1}, 16, v{lo}")
            e(f"  ds_write_b128 v16, v[{PK+t*4}:{PK+t*4+3}] offset:{so + t*1024}")
            e(f"  ds_write_b16 v17, v{RES+t*9+8} offset:{so + t*16}")
        def look(t):
            DIST = opt.get('dist', 2)
            for i in range(9 + DIST):
                if i < 9:
                    r = qreg(c + 1, i) + t
                    e(f"  v_lshl_add_u32 v{r}, v{r}, 7, v12")
                if i >= DIST:
                    j = i - DIST; r = qreg(c + 1, j) + t
                    of = (4096 if j == 8 else 0) + (t//2)*2048 + (t%2)*2
                    e(f"  ds_read_u16 v{RES + t*9 + j}, v{r} offset:{of}")
                if i in VPOS: vissue(1)
        VPOS = (3, 7) if XC else (1, 4, 7, 9)
        if c == -1 or early or c + 1 == NCH:
            if c >= 0:
                for t in range(4):
                    e(f"  s_waitcnt lgkmcnt({min(15, (3-t)*9 + 2*t)})"); pack(t)
                e("  s_waitcnt lgkmcnt(0)"); bar()
            if c + 1 < NCH:
                vwait(('q', c + 1))
                for t in range(4): look(t)
            vissue(99)
        else:
            vwait(('q', c + 1))
            for t in range(4):
                e("  s_waitcnt lgkmcnt(15)"); pack(t); look(t)
            vissue(99)
            e("  s_waitcnt lgkmcnt(9)")
            bar()
    dump()
    e("L_end:")
    e("  s_endpgm")
    e('.section .rodata,"a"'); e(".p2align 6"); e(f".amdhsa_kernel {NAME}_kernel")
    for l in ("next_free_vgpr 256","next_free_sgpr 72","accum_offset 256","group_segment_fixed_size 0","kernarg_size 48","user_sgpr_count 2","user_sgpr_kernarg_segment_ptr 1","system_sgpr_workgroup_id_x 1"): e("  .amdhsa_"+l)
    e(".end_amdhsa_kernel")
    drop = [d for d in opt.get('drop', '').split('+') if d]
    pi = o.index("L_producer:")
    lb = max(i for i, x in enumerate(o) if x and 'v_lshl_add_u32 v17' in x)
    o = [x for i, x in enumerate(o) if not (x and i > lb and any(d in x for d in drop))]
    return "\n".join(x for x in o if x is not None) + "\n"

if __name__ == "__main__":
    opt = {}
    for a in sys.argv[2:]:
        k, v = a.split("=")
        try: v = int(v)
        except ValueError: pass
        opt[k] = v
    open(sys.argv[1], "w").write(gen(opt))
```

```python
import sys
NAME = "standalone__weight_only_int_squeezellm__prompt"
M, K, N = 2048, 576, 4608
KS = 18; NCH = 9
WBASE = 8192
WK = 9216
WSLOT = 2 * WK
NSLOT = 3
XB = WBASE + NSLOT * WSLOT
XW = 24576
LDS = XB + 4 * XW

def gen(opt):
    QD = opt.get('qd', 3); LQ = opt.get('lq', 2); XC = opt.get('xc', 0)
    assert LQ < QD
    sf = opt.get('store_flags', '').replace('+', ' ')
    qf = opt.get('q_flags', '').replace('+', ' ')
    cprio = opt.get('cprio', 0); pprio = opt.get('pprio', 0)
    PF = opt.get('pf', 5)
    TAIL = opt.get('tail', 0)
    o = []; e = o.append
    STAMP = opt.get('stamp', 0); nst = [0]
    def stamp():
        if not STAMP: return
        e("  s_memrealtime s[44:45]"); e("  s_memtime s[64:65]"); e("  s_waitcnt lgkmcnt(0)")
        e(f"  v_writelane_b32 v18, s64, {16+nst[0]}")
        e(f"  v_writelane_b32 v18, s44, {nst[0]}"); nst[0] += 1
    def dump():
        if not STAMP: return
        e("  s_waitcnt vmcnt(0)"); stamp()
        for l in ("s_load_dwordx2 s[36:37], s[0:1], 40", "s_waitcnt lgkmcnt(0)", "s_and_b32 s37, s37, 0xffff",
                  "s_mov_b32 s38, 0x100000", "s_mov_b32 s39, 0x00020000", "s_lshl_b32 s46, s2, 3", "s_add_u32 s46, s46, s47",
                  "s_lshl_b32 s46, s46, 7", "v_and_b32 v19, 63, v0", "v_lshlrev_b32 v19, 2, v19", "v_cmp_gt_u32 vcc, 128, v19",
                  "s_and_saveexec_b64 s[44:45], vcc", "buffer_store_dword v18, v19, s[36:39], s46 offen", "s_waitcnt vmcnt(0)"): e("  " + l)
        nst[0] = 2
    e(f"; @launch grid=(256,1,1) block=(512,1,1) lds={LDS}")
    e('.amdgcn_target "amdgcn-amd-amdhsa--gfx950"')
    e(".text"); e(f".globl {NAME}_kernel"); e(".p2align 8")
    e(f".type {NAME}_kernel,@function"); e(f"{NAME}_kernel:")
    e("  s_cmp_ge_u32 s2, 256")
    e("  s_cbranch_scc1 L_end")
    stamp()
    e("  s_load_dwordx4 s[4:7], s[0:1], 0")
    e("  s_load_dwordx4 s[8:11], s[0:1], 16")
    e("  v_lshrrev_b32 v1, 6, v0")
    e("  v_and_b32 v2, 63, v0")
    e("  v_readfirstlane_b32 s3, v1")
    e("  s_and_b32 s12, s2, 7")
    e("  s_lshr_b32 s13, s2, 3")
    e("  s_and_b32 s14, s13, 3")
    e("  s_lshl_b32 s12, s12, 2")
    e("  s_add_u32 s12, s12, s14")
    e("  s_lshr_b32 s13, s13, 2")
    e("  s_mul_i32 s14, s12, 144")
    e("  s_lshl_b32 s15, s13, 8")
    e("  v_lshrrev_b32 v3, 4, v2")
    e("  v_and_b32 v4, 15, v2")
    e("  s_and_b32 s40, s3, 3")
    e("  s_lshl_b32 s34, s40, 6")
    e("  s_add_u32 s34, s34, s15")
    e("  s_mul_i32 s41, s34, 1152")
    e(f"  s_mul_i32 s40, s40, {XW}")
    e(f"  s_add_u32 s40, s40, {XB}")
    e("  v_lshrrev_b32 v12, 3, v2")
    e("  s_movk_i32 s32, 1152")
    e("  v_mul_lo_u32 v12, v12, s32")
    e("  v_add_u32 v12, s41, v12")
    e("  v_and_b32 v13, 7, v2")
    e("  v_xor_b32 v13, v13, v3")
    e("  v_lshl_add_u32 v14, v13, 4, v12")
    e("  v_xor_b32 v13, 4, v13")
    e("  v_lshl_add_u32 v15, v13, 4, v12")
    e("  s_waitcnt lgkmcnt(0)")
    for (d, b, sz) in ((16, 4, M*K*2), (20, 6, K*N*4), (24, 8, 16*N*2), (28, 10, M*N*2)):
        e(f"  s_mov_b32 s{d}, s{b}")
        e(f"  s_and_b32 s{d+1}, s{b+1}, 0xffff")
        e(f"  s_mov_b32 s{d+2}, {sz}")
        e(f"  s_mov_b32 s{d+3}, 0x00020000")
    for i in range(8): e(f"  s_mov_b32 s{56+i}, {i*9216 - (i%4)*1024}")
    def xdma(c, i):
        r = []
        if i % 4 == 0: r += [f"  s_add_u32 m0, s40, {(c%3)*8192 + i*1024}", "  s_nop 0"]
        r.append(f"  buffer_load_dwordx4 v{14 + i%2}, s[16:19], s{56+i} offen offset:{(i%4)*1024} lds")
        if i == 7: r += ["  v_add_u32 v14, 128, v14", "  v_add_u32 v15, 128, v15"]
        return r
    e("  s_mov_b32 s47, s3")
    stamp()
    e("  s_cmp_ge_u32 s3, 4")
    e("  s_cbranch_scc1 L_producer")

    XR = 20; WR = 80; ACC = 112; NW = 8
    assert PF < NW
    def acc(rt, ct): return ACC + (ct * 4 + rt) * 4
    if cprio: e(f"  s_setprio {cprio}")
    e("  v_lshrrev_b32 v5, 4, v0")
    e("  s_movk_i32 s32, 9216")
    e("  v_mul_lo_u32 v6, v5, s32")
    e("  s_lshl_b32 s33, s14, 1")
    e("  v_add_u32 v6, s33, v6")
    e("  v_and_b32 v7, 1, v4")
    e("  v_lshl_add_u32 v7, v7, 4, v6")
    e("  v_lshl_add_u32 v6, v4, 4, v6")
    e(f"  buffer_load_dwordx4 v[{WR}:{WR+3}], v6, s[24:27], 0 offen")
    e(f"  buffer_load_dwordx4 v[{WR+4}:{WR+7}], v7, s[24:27], 0 offen offset:256")
    for i in range(8):
        for l in xdma(0, i): e(l)
    e("  v_lshlrev_b32 v9, 7, v5")
    e("  v_lshl_add_u32 v9, v4, 3, v9")
    e("  v_lshlrev_b32 v10, 4, v2")
    e(f"  v_add_u32 v10, {WBASE}, v10")
    e("  v_xor_b32 v11, 64, v10")
    e("  v_lshrrev_b32 v12, 1, v4")
    e("  v_xor_b32 v12, v12, v3")
    e("  v_lshlrev_b32 v12, 4, v12")
    e("  v_lshl_add_u32 v12, v4, 7, v12")
    if opt.get('xlin'): e("  v_lshlrev_b32 v12, 4, v2")
    if not opt.get('xlow'): e("  v_add_u32 v12, s40, v12")
    e("  v_xor_b32 v13, 64, v12")
    e("  v_lshl_add_u32 v6, v3, 2, s34")
    e("  v_mul_lo_u32 v6, v6, s32")
    e("  v_add_u32 v6, s33, v6")
    e("  v_lshl_add_u32 v6, v4, 4, v6")
    e("  v_add_u32 v7, s34, v4")
    e("  v_mul_lo_u32 v7, v7, s32")
    e("  v_add_u32 v7, s33, v7")
    e("  v_lshl_add_u32 v7, v3, 3, v7")
    stamp()
    e("  s_waitcnt vmcnt(8)")
    stamp()
    for tb in range(2):
        b = WR + 4*tb
        e(f"  ds_write_b32 v9, v{b} offset:{tb*4096}")
        e(f"  ds_write_b32 v9, v{b+2} offset:{tb*4096+4}")
        e(f"  ds_write_b32 v9, v{b+1} offset:{tb*4096+2048}")
        e(f"  ds_write_b32 v9, v{b+3} offset:{tb*4096+2048+4}")
    e("  s_waitcnt lgkmcnt(0)")
    e("  s_barrier")
    NPRE = 0
    def prefetch():
        e("  s_lshr_b32 s36, s2, 3")
        e("  s_mul_i32 s37, s36, 73728")
        e("  s_lshl_b32 s38, s3, 13")
        e("  s_add_u32 s38, s38, s37")
        e("  v_lshl_add_u32 v5, v2, 7, s38")
        e("  buffer_load_dword v1, v5, s[16:19], 0 offen")
        e("  v_add_u32 v5, 32768, v5")
        e("  buffer_load_dword v1, v5, s[16:19], 0 offen")
        e("  s_lshl_b32 s38, s3, 11")
        e("  s_add_u32 s38, s38, s37")
        e("  s_add_u32 s38, s38, 65536")
        e("  v_lshl_add_u32 v5, v4, 7, s38")
        e("  buffer_load_dword v1, v5, s[16:19], 0 offen")
        e("  s_mul_i32 s37, s36, 331776")
        e("  s_and_b32 s38, s2, 7")
        e("  s_mul_i32 s38, s38, 2304")
        e("  s_add_u32 s37, s37, s38")
        e("  s_mul_i32 s38, s3, 81")
        e("  s_movk_i32 s39, 3641")
        e("  s_movk_i32 s36, 16128")
        for k in range(2):
            if k == 0: e("  v_add_u32 v5, s38, v2")
            else:
                e("  v_min_u32 v5, 16, v2"); e("  v_add_u32 v5, s38, v5"); e("  v_add_u32 v5, 64, v5")
            e("  v_mul_lo_u32 v8, v5, s39")
            e("  v_lshrrev_b32 v8, 16, v8")
            e("  v_mul_lo_u32 v8, v8, s36")
            e("  v_lshl_add_u32 v5, v5, 7, v8")
            e("  v_add_u32 v5, s37, v5")
            e("  buffer_load_dword v1, v5, s[20:23], 0 offen")
    if opt.get('pre') == 1: prefetch()
    for i in range(8):
        for l in xdma(1, i): e(l)
    if opt.get('pre') == 2: prefetch(); NPRE = 5
    stamp()
    groups = []
    ksn = KS - 2*TAIL
    for ks in range(ksn):
        for ct in range(9): groups.append((ks, ct, (0,1,2,3)))
    for half in ((0,1),(2,3)):
        for ks in range(ksn, KS):
            for ct in range(9): groups.append((ks, ct, half))
    NG = len(groups)
    xalloc = {}; xorder = []
    for gi, (ks, ct, rts) in enumerate(groups):
        for rt in rts:
            if (ks, rt) not in xalloc:
                xalloc[(ks, rt)] = XR + (len(xorder) % 12) * 4; xorder.append((gi, ks, rt))
    def wread(gi):
        ks, ct, _ = groups[gi]; r = WR + (gi % NW) * 4
        a = 11 if 4 <= ct < 8 else 10
        return f"  ds_read_b128 v[{r}:{r+3}], v{a} offset:{((ks//2) % NSLOT)*WSLOT + (ks%2)*WK + ct*1024}"
    def xread(ks, rt):
        r = xalloc[(ks, rt)]
        return f"  ds_read_b128 v[{r}:{r+3}], v{12 + ks%2} offset:{((ks//2)%3)*8192 + rt*2048}"
    plan = {g: [] for g in range(-PF, NG)}
    for gi in range(NG): plan[gi-PF].append(('w', gi))
    cnt = {}
    for (gi, ks, rt) in xorder:
        j = cnt.get(gi, 0); cnt[gi] = j + 1
        plan[gi - PF + min(j, PF-2) if gi >= PF else -PF].append(('x', ks, rt))
    issued = []; barrier_done = 0; stored = set()
    tmpc = [0]
    def chunk_of(it): return (groups[it[1]][0] if it[0] == 'w' else it[1]) // 2
    def do_issue(pos):
        nonlocal barrier_done
        for it in plan[pos]:
            c = chunk_of(it)
            while barrier_done <= c:
                px = {0: 5 if opt.get('pre') else 0, 1: NPRE}.get(barrier_done, 0)
                if XC: e(f"  s_waitcnt vmcnt({(8 if barrier_done + 1 < NCH else 0) + px})")
                elif barrier_done < 2: e(f"  s_waitcnt vmcnt({8 - 8*barrier_done + px})")
                e("  s_barrier"); barrier_done += 1
                if barrier_done in (1, 2, 5): stamp()
            if not opt.get('nords') and opt.get('nord') != it[0]: e(wread(it[1]) if it[0] == 'w' else xread(it[1], it[2]))
            issued.append(it)
    store_q = []
    def store_items(rts):
        its = []
        for rt in rts:
            for r in range(4): its.append(('m', rt, r))
            its.append(('t', rt, 0))
        return its
    def emit_store(it, tmp):
        kind, rt, r = it
        if kind == 'm':
            for p in range(4):
                e(f"  v_cvt_pk_bf16_f32 v{tmp+p}, v{acc(rt,2*p)+r}, v{acc(rt,2*p+1)+r}")
            e(f"  s_mov_b32 s36, {(16*rt + r)*9216}")
            if not opt.get('nostore'): e(f"  buffer_store_dwordx4 v[{tmp}:{tmp+3}], v6, s[28:31], s36 offen {sf}")
        else:
            a0 = acc(rt, 8)
            e(f"  v_cvt_pk_bf16_f32 v{tmp}, v{a0}, v{a0+1}")
            e(f"  v_cvt_pk_bf16_f32 v{tmp+1}, v{a0+2}, v{a0+3}")
            e(f"  s_mov_b32 s36, {16*rt*9216}")
            if not opt.get('nostore'): e(f"  buffer_store_dwordx2 v[{tmp}:{tmp+1}], v7, s[28:31], s36 offen offset:256 {sf}")
    for pos in range(-PF, 0): do_issue(pos)
    first_h2 = ksn*9 + 2*TAIL*9 if TAIL else None
    for gi, (ks, ct, rts) in enumerate(groups):
        need = [('w', gi)] + [('x', ks, rt) for rt in rts]
        last = max(issued.index(n) for n in need)
        n_after = len(issued) - 1 - last
        assert n_after <= 15
        e(f"  s_waitcnt lgkmcnt({n_after})")
        w = WR + (gi % NW) * 4
        pl = plan[gi]
        for ri, rt in enumerate(rts):
            a = acc(rt, ct); x = xalloc[(ks, rt)]
            cin = "0" if ks == 0 else f"v[{a}:{a+3}]"
            A, B = (x, w) if ct < 8 else (w, x)
            if opt.get('m32') and ct < 8:
                if ri < 2:
                    a = ACC + (2*(ct%4) + ri)*16; x = xalloc[(ks, ri + 2*(ct//4))]
                    cin = "0" if (ks == 0 and ct < 4) else f"v[{a}:{a+15}]"
                    e(f"  v_mfma_f32_32x32x16_bf16 v[{a}:{a+15}], v[{x}:{x+3}], v[{w}:{w+3}], {cin}")
                if ri == 2 and ct < 4 and opt.get('m32') == 2: e(f"  ds_read_b128 v[{68+0}:{68+3}], v12 offset:{ct*2048}"); issued.append(('z', ks, ct))
            elif not opt.get('nomfma'):
                e(f"  v_mfma_f32_16x16x32_bf16 v[{a}:{a+3}], v[{A}:{A+3}], v[{B}:{B+3}], {cin}")
            plan[gi] = pl[ri:ri+1] if ri + 1 < len(rts) else pl[ri:]
            do_issue(gi)
        if XC and ks // 2 + 2 < NCH and gi % 18 < 13 and (gi % 18) % 3 != 2 and gi % 18 != 12:
            xi = (gi % 18) - (gi % 18) // 3
            for l in xdma(ks // 2 + 2, xi): e(l)
        if TAIL and gi == first_h2 + 1: store_q = store_items((0, 1))
        if store_q and gi % opt.get('sgap', 2) == 0:
            it = store_q.pop(0)
            kind, rt, r = it
            emit_store(it, 68 + 4 * (tmpc[0] % 3)); tmpc[0] += 1
    e("  s_nop 7"); e("  s_nop 7"); e("  s_nop 3"); stamp()
    rest = store_q + store_items((2, 3) if TAIL else (0, 1, 2, 3))
    tmp = 20
    for it in rest:
        emit_store(it, tmp); tmp += 4
        assert tmp <= 112
    stamp(); dump()
    e("  s_endpgm")

    e("L_producer:")
    if opt.get('noprod'): e("  s_endpgm")
    if pprio: e(f"  s_setprio {pprio}")
    QR = 20; RES = QR + QD*36; PK = RES + 36
    assert PK + 16 <= 256
    def qreg(c, j): return QR + (c % QD)*36 + j*4
    e("  s_sub_u32 s3, s3, 4")
    e("  v_lshrrev_b32 v5, 5, v2")
    e("  v_and_b32 v6, 31, v2")
    e("  s_lshl_b32 s32, s3, 1")
    e("  v_add_u32 v7, s32, v5")
    e("  s_mov_b32 s34, 147456")
    e("  v_mul_lo_u32 v8, v7, s34")
    e("  s_lshl_b32 s33, s14, 2")
    e("  v_lshl_add_u32 v8, v6, 4, v8")
    e("  v_add_u32 v8, s33, v8")
    e("  v_lshrrev_b32 v9, 2, v2")
    e("  s_lshl_b32 s35, s3, 4")
    e("  v_add_u32 v9, s35, v9")
    e("  s_movk_i32 s34, 18432")
    e("  v_mul_lo_u32 v10, v9, s34")
    e("  v_and_b32 v11, 3, v2")
    e("  v_lshl_add_u32 v10, v11, 4, v10")
    e("  v_add_u32 v10, s33, v10")
    vm = []
    for j in range(8): e(f"  s_mov_b32 s{48+j}, {j*18432}")
    def qload(c, j):
        r = qreg(c, j); vm.append(('q', c))
        if j == 8:
            return [f"  buffer_load_dwordx4 v[{r}:{r+3}], v10, s[20:23], 0 offen offset:512 {qf}",
                    f"  v_add_u32 v8, {64*18432}, v8", f"  v_add_u32 v10, {64*18432}, v10"]
        return [f"  buffer_load_dwordx4 v[{r}:{r+3}], v8, s[20:23], s{48+j} offen {qf}"]
    def vwait(key):
        if key not in vm: return
        last = max(i for i, k in enumerate(vm) if k == key)
        e(f"  s_waitcnt vmcnt({min(63, len(vm)-1-last)})")
    for j in range(9):
        for l in qload(0, j): e(l)
    stamp()
    e("  v_lshlrev_b32 v12, 2, v6")
    e("  v_and_b32 v1, 1, v6")
    e("  v_lshrrev_b32 v13, 1, v6")
    e("  v_lshlrev_b32 v16, 2, v1")
    e("  v_xor_b32 v13, v13, v16")
    e("  v_lshlrev_b32 v13, 4, v13")
    e("  v_lshl_add_u32 v13, v1, 12, v13")
    e("  v_lshrrev_b32 v1, 2, v7")
    e(f"  s_movk_i32 s34, {WK}")
    e("  v_mul_lo_u32 v1, v1, s34")
    e("  v_add_u32 v13, v13, v1")
    e("  v_and_b32 v1, 3, v7")
    e("  v_lshl_add_u32 v13, v1, 8, v13")
    e(f"  v_add_u32 v16, {WBASE}, v13")
    e("  v_lshrrev_b32 v1, 5, v9")
    e("  v_mul_lo_u32 v1, v1, s34")
    e(f"  v_add_u32 v13, {WBASE + 8192}, v1")
    e("  v_bfe_u32 v1, v9, 3, 2")
    e("  v_lshl_add_u32 v13, v1, 8, v13")
    e("  v_lshl_add_u32 v13, v11, 6, v13")
    e("  v_and_b32 v1, 7, v9")
    e("  v_lshl_add_u32 v17, v1, 1, v13")
    stamp()
    e("  s_barrier")
    stamp()
    if not XC: e("  v_add_u32 v14, 256, v14"); e("  v_add_u32 v15, 256, v15")
    D16 = opt.get('d16', 0); PST = (3, 4)
    vq = []
    for c in range(-1, NCH):
        so = (c % NSLOT) * WSLOT
        if not XC and c >= 1 and c + 1 < NCH: vq += [('x', c + 1, i) for i in range(8)]
        if c == -1: vq += [('q', cc, j) for cc in range(1, LQ) for j in range(9)]
        if c + 1 + LQ < NCH: vq += [('q', c + 1 + LQ, j) for j in range(9)]
        def vissue(n):
            for _ in range(n):
                if not vq: return
                k, cc, i = vq.pop(0)
                if k == 'x':
                    for l in xdma(cc, i): e(l)
                    vm.append(('x', cc))
                else:
                    for l in qload(cc, i): e(l)
        early = c >= 0 and c < opt.get('early', 1)
        def bar():
            vwait(('x', c))
            if c in PST: stamp()
            e("  s_barrier")
            if c in PST: stamp()
        def pack(t):
            for jj in range(4):
                lo = RES + t*9 + 2*jj
                e(f"  v_lshl_or_b32 v{PK + t*4 + jj}, v{lo+1}, 16, v{lo}")
            e(f"  ds_write_b128 v16, v[{PK+t*4}:{PK+t*4+3}] offset:{so + t*1024}")
            e(f"  ds_write_b16 v17, v{RES+t*9+8} offset:{so + t*16}")
        def look(t):
            DIST = opt.get('dist', 2)
            for i in range(9 + DIST):
                if i < 9:
                    r = qreg(c + 1, i) + t
                    e(f"  v_lshl_add_u32 v{r}, v{r}, 7, v12")
                if i >= DIST:
                    j = i - DIST; r = qreg(c + 1, j) + t
                    of = (4096 if j == 8 else 0) + (t//2)*2048 + (t%2)*2
                    e(f"  ds_read_u16 v{RES + t*9 + j}, v{r} offset:{of}")
                if i in VPOS: vissue(1)
        VPOS = (3, 7) if XC else (1, 4, 7, 9)
        if c == -1: VPOS = (2, 5, 8)[:opt.get('vp0', 3)]
        if c == 0: VPOS = (1, 4, 7, 9)
        if c == -1 or early or c + 1 == NCH:
            if c >= 0:
                for t in range(4):
                    e(f"  s_waitcnt lgkmcnt({min(15, (3-t)*9 + 2*t)})"); pack(t)
                e("  s_waitcnt lgkmcnt(0)"); bar()
            if c + 1 < NCH:
                while any(k == 'q' and cc == c + 1 for k, cc, _ in vq): vissue(1)
                vwait(('q', c + 1))
                for t in range(4): look(t)
            if c >= 0: vissue(99)
        elif opt.get('mid', 1):
            for t in range(4):
                e(f"  s_waitcnt lgkmcnt({min(15, (3-t)*9 + 2*t)})"); pack(t)
            vwait(('q', c + 1))
            look(0); look(1)
            e("  s_waitcnt lgkmcnt(15)")
            bar()
            look(2); look(3)
            vissue(99)
        else:
            vwait(('q', c + 1))
            for t in range(4):
                e("  s_waitcnt lgkmcnt(15)"); pack(t); look(t)
            vissue(99)
            e("  s_waitcnt lgkmcnt(9)")
            bar()
    dump()
    e("L_end:")
    e("  s_endpgm")
    e('.section .rodata,"a"'); e(".p2align 6"); e(f".amdhsa_kernel {NAME}_kernel")
    for l in ("next_free_vgpr 256","next_free_sgpr 72","accum_offset 256","group_segment_fixed_size 0","kernarg_size 48","user_sgpr_count 2","user_sgpr_kernarg_segment_ptr 1","system_sgpr_workgroup_id_x 1"): e("  .amdhsa_"+l)
    e(".end_amdhsa_kernel")
    drop = [d for d in opt.get('drop', '').split('+') if d]
    pi = o.index("L_producer:")
    lb = max(i for i, x in enumerate(o) if x and 'v_lshl_add_u32 v17' in x)
    o = [x for i, x in enumerate(o) if not (x and i > lb and any(d in x for d in drop))]
    return "\n".join(x for x in o if x is not None) + "\n"

if __name__ == "__main__":
    opt = {}
    for a in sys.argv[2:]:
        k, v = a.split("=")
        try: v = int(v)
        except ValueError: pass
        opt[k] = v
    open(sys.argv[1], "w").write(gen(opt))
```

```python
import sys
NAME = "standalone__weight_only_int_squeezellm__prompt"
M, K, N = 2048, 576, 4608
KS = 18; NCH = 9
WBASE = 8192
WK = 9216
WSLOT = 2 * WK
NSLOT = 3
XB = WBASE + NSLOT * WSLOT
XW = 24576
LDS = XB + 4 * XW

def gen(opt):
    QD = opt.get('qd', 3); LQ = opt.get('lq', 2); XC = opt.get('xc', 0)
    assert LQ < QD
    sf = opt.get('store_flags', '').replace('+', ' ')
    qf = opt.get('q_flags', '').replace('+', ' ')
    cprio = opt.get('cprio', 0); pprio = opt.get('pprio', 0)
    PF = opt.get('pf', 5)
    TAIL = opt.get('tail', 0)
    o = []; e = o.append
    STAMP = opt.get('stamp', 0); nst = [0]
    def stamp():
        if not STAMP: return
        e("  s_memrealtime s[44:45]"); e("  s_memtime s[64:65]"); e("  s_waitcnt lgkmcnt(0)")
        e(f"  v_writelane_b32 v18, s64, {16+nst[0]}")
        e(f"  v_writelane_b32 v18, s44, {nst[0]}"); nst[0] += 1
    def dump():
        if not STAMP: return
        e("  s_waitcnt vmcnt(0)"); stamp()
        for l in ("s_load_dwordx2 s[36:37], s[0:1], 40", "s_waitcnt lgkmcnt(0)", "s_and_b32 s37, s37, 0xffff",
                  "s_mov_b32 s38, 0x100000", "s_mov_b32 s39, 0x00020000", "s_lshl_b32 s46, s2, 3", "s_add_u32 s46, s46, s47",
                  "s_lshl_b32 s46, s46, 7", "v_and_b32 v19, 63, v0", "v_lshlrev_b32 v19, 2, v19", "v_cmp_gt_u32 vcc, 128, v19",
                  "s_and_saveexec_b64 s[44:45], vcc", "buffer_store_dword v18, v19, s[36:39], s46 offen", "s_waitcnt vmcnt(0)"): e("  " + l)
        nst[0] = 2
    e(f"; @launch grid=(256,1,1) block=(512,1,1) lds={LDS}")
    e('.amdgcn_target "amdgcn-amd-amdhsa--gfx950"')
    e(".text"); e(f".globl {NAME}_kernel"); e(".p2align 8")
    e(f".type {NAME}_kernel,@function"); e(f"{NAME}_kernel:")
    e("  s_cmp_ge_u32 s2, 256")
    e("  s_cbranch_scc1 L_end")
    stamp()
    e("  s_load_dwordx4 s[4:7], s[0:1], 0")
    e("  s_load_dwordx4 s[8:11], s[0:1], 16")
    e("  v_lshrrev_b32 v1, 6, v0")
    e("  v_and_b32 v2, 63, v0")
    e("  v_readfirstlane_b32 s3, v1")
    e("  s_and_b32 s12, s2, 7")
    e("  s_lshr_b32 s13, s2, 3")
    if opt.get('map', 0):
        e("  s_lshr_b32 s15, s12, 2")
        e("  s_and_b32 s12, s12, 3")
        e("  s_lshl_b32 s12, s12, 3")
        e("  s_and_b32 s14, s13, 7")
        e("  s_add_u32 s12, s12, s14")
        e("  s_lshr_b32 s13, s13, 3")
        e("  s_lshl_b32 s15, s15, 2")
        e("  s_add_u32 s13, s13, s15")
    else:
        e("  s_and_b32 s14, s13, 3")
        e("  s_lshl_b32 s12, s12, 2")
        e("  s_add_u32 s12, s12, s14")
        e("  s_lshr_b32 s13, s13, 2")
    e("  s_mul_i32 s14, s12, 144")
    e("  s_lshl_b32 s15, s13, 8")
    e("  v_lshrrev_b32 v3, 4, v2")
    e("  v_and_b32 v4, 15, v2")
    e("  s_and_b32 s40, s3, 3")
    e("  s_lshl_b32 s34, s40, 6")
    e("  s_add_u32 s34, s34, s15")
    e("  s_mul_i32 s41, s34, 1152")
    e(f"  s_mul_i32 s40, s40, {XW}")
    e(f"  s_add_u32 s40, s40, {XB}")
    e("  v_lshrrev_b32 v12, 3, v2")
    e("  s_movk_i32 s32, 1152")
    e("  v_mul_lo_u32 v12, v12, s32")
    e("  v_add_u32 v12, s41, v12")
    e("  v_and_b32 v13, 7, v2")
    e("  v_xor_b32 v13, v13, v3")
    e("  v_lshl_add_u32 v14, v13, 4, v12")
    e("  v_xor_b32 v13, 4, v13")
    e("  v_lshl_add_u32 v15, v13, 4, v12")
    e("  s_waitcnt lgkmcnt(0)")
    for (d, b, sz) in ((16, 4, M*K*2), (20, 6, K*N*4), (24, 8, 16*N*2), (28, 10, M*N*2)):
        e(f"  s_mov_b32 s{d}, s{b}")
        e(f"  s_and_b32 s{d+1}, s{b+1}, 0xffff")
        e(f"  s_mov_b32 s{d+2}, {sz}")
        e(f"  s_mov_b32 s{d+3}, 0x00020000")
    for i in range(8): e(f"  s_mov_b32 s{56+i}, {i*9216 - (i%4)*1024}")
    def xdma(c, i):
        r = []
        if i % 4 == 0: r += [f"  s_add_u32 m0, s40, {(c%3)*8192 + i*1024}", "  s_nop 0"]
        r.append(f"  buffer_load_dwordx4 v{14 + i%2}, s[16:19], s{56+i} offen offset:{(i%4)*1024} lds")
        if i == 7: r += ["  v_add_u32 v14, 128, v14", "  v_add_u32 v15, 128, v15"]
        return r
    e("  s_mov_b32 s47, s3")
    stamp()
    e("  s_cmp_ge_u32 s3, 4")
    e("  s_cbranch_scc1 L_producer")

    XR = 20; WR = 80; ACC = 112; NW = 8
    assert PF < NW
    def acc(rt, ct): return ACC + (ct * 4 + rt) * 4
    if cprio: e(f"  s_setprio {cprio}")
    e("  v_lshrrev_b32 v5, 4, v0")
    e("  s_movk_i32 s32, 9216")
    e("  v_mul_lo_u32 v6, v5, s32")
    e("  s_lshl_b32 s33, s14, 1")
    e("  v_add_u32 v6, s33, v6")
    e("  v_and_b32 v7, 1, v4")
    e("  v_lshl_add_u32 v7, v7, 4, v6")
    e("  v_lshl_add_u32 v6, v4, 4, v6")
    e(f"  buffer_load_dwordx4 v[{WR}:{WR+3}], v6, s[24:27], 0 offen")
    e(f"  buffer_load_dwordx4 v[{WR+4}:{WR+7}], v7, s[24:27], 0 offen offset:256")
    XL = opt.get('xl', 0)
    for i in range(8 - XL):
        for l in xdma(0, i): e(l)
    e("  v_lshlrev_b32 v9, 7, v5")
    e("  v_lshl_add_u32 v9, v4, 3, v9")
    e("  v_lshlrev_b32 v10, 4, v2")
    e(f"  v_add_u32 v10, {WBASE}, v10")
    e("  v_xor_b32 v11, 64, v10")
    e("  v_lshrrev_b32 v12, 1, v4")
    e("  v_xor_b32 v12, v12, v3")
    e("  v_lshlrev_b32 v12, 4, v12")
    e("  v_lshl_add_u32 v12, v4, 7, v12")
    if opt.get('xlin'): e("  v_lshlrev_b32 v12, 4, v2")
    if not opt.get('xlow'): e("  v_add_u32 v12, s40, v12")
    e("  v_xor_b32 v13, 64, v12")
    e("  v_lshl_add_u32 v6, v3, 2, s34")
    e("  v_mul_lo_u32 v6, v6, s32")
    e("  v_add_u32 v6, s33, v6")
    e("  v_lshl_add_u32 v6, v4, 4, v6")
    e("  v_add_u32 v7, s34, v4")
    e("  v_mul_lo_u32 v7, v7, s32")
    e("  v_add_u32 v7, s33, v7")
    e("  v_lshl_add_u32 v7, v3, 3, v7")
    stamp()
    e(f"  s_waitcnt vmcnt({8 - XL})")
    stamp()
    for tb in range(2):
        b = WR + 4*tb
        e(f"  ds_write_b32 v9, v{b} offset:{tb*4096}")
        e(f"  ds_write_b32 v9, v{b+2} offset:{tb*4096+4}")
        e(f"  ds_write_b32 v9, v{b+1} offset:{tb*4096+2048}")
        e(f"  ds_write_b32 v9, v{b+3} offset:{tb*4096+2048+4}")
    if opt.get('xlb', 0):
        for i in range(8 - XL, 8):
            for l in xdma(0, i): e(l)
    e("  s_waitcnt lgkmcnt(0)")
    e("  s_barrier")
    if not opt.get('xlb', 0):
        for i in range(8 - XL, 8):
            for l in xdma(0, i): e(l)
    NPRE = 0
    def prefetch():
        e("  s_lshr_b32 s36, s2, 3")
        e("  s_mul_i32 s37, s36, 73728")
        e("  s_lshl_b32 s38, s3, 13")
        e("  s_add_u32 s38, s38, s37")
        e("  v_lshl_add_u32 v5, v2, 7, s38")
        e("  buffer_load_dword v1, v5, s[16:19], 0 offen")
        e("  v_add_u32 v5, 32768, v5")
        e("  buffer_load_dword v1, v5, s[16:19], 0 offen")
        e("  s_lshl_b32 s38, s3, 11")
        e("  s_add_u32 s38, s38, s37")
        e("  s_add_u32 s38, s38, 65536")
        e("  v_lshl_add_u32 v5, v4, 7, s38")
        e("  buffer_load_dword v1, v5, s[16:19], 0 offen")
        e("  s_mul_i32 s37, s36, 331776")
        e("  s_and_b32 s38, s2, 7")
        e("  s_mul_i32 s38, s38, 2304")
        e("  s_add_u32 s37, s37, s38")
        e("  s_mul_i32 s38, s3, 81")
        e("  s_movk_i32 s39, 3641")
        e("  s_movk_i32 s36, 16128")
        for k in range(2):
            if k == 0: e("  v_add_u32 v5, s38, v2")
            else:
                e("  v_min_u32 v5, 16, v2"); e("  v_add_u32 v5, s38, v5"); e("  v_add_u32 v5, 64, v5")
            e("  v_mul_lo_u32 v8, v5, s39")
            e("  v_lshrrev_b32 v8, 16, v8")
            e("  v_mul_lo_u32 v8, v8, s36")
            e("  v_lshl_add_u32 v5, v5, 7, v8")
            e("  v_add_u32 v5, s37, v5")
            e("  buffer_load_dword v1, v5, s[20:23], 0 offen")
    if opt.get('pre') == 1: prefetch()
    for i in range(8):
        for l in xdma(1, i): e(l)
    if opt.get('pre') == 2: prefetch(); NPRE = 5
    stamp()
    groups = []
    ksn = KS - 2*TAIL
    for ks in range(ksn):
        for ct in range(9): groups.append((ks, ct, (0,1,2,3)))
    HYB = opt.get('hyb', 0)
    if HYB:
        assert TAIL == 2
        A_, B_ = (0,1), (2,3)
        order = {1: [(14,A_),(15,A_),(14,B_),(16,A_),(17,A_),(15,B_),(16,B_),(17,B_)],
                 2: [(14,(0,1,2,3)),(15,A_),(16,A_),(17,A_),(15,B_),(16,B_),(17,B_)]}[HYB]
        for ks, half in order:
            for ct in range(9): groups.append((ks, ct, half))
    else:
      for half in ((0,1),(2,3)):
        for ks in range(ksn, KS):
            for ct in range(9): groups.append((ks, ct, half))
    NG = len(groups)
    xalloc = {}; xorder = []
    for gi, (ks, ct, rts) in enumerate(groups):
        for rt in rts:
            if (ks, rt) not in xalloc:
                xalloc[(ks, rt)] = XR + (len(xorder) % 12) * 4; xorder.append((gi, ks, rt))
    def wread(gi):
        ks, ct, _ = groups[gi]; r = WR + (gi % NW) * 4
        a = 11 if 4 <= ct < 8 else 10
        return f"  ds_read_b128 v[{r}:{r+3}], v{a} offset:{((ks//2) % NSLOT)*WSLOT + (ks%2)*WK + ct*1024}"
    def xread(ks, rt):
        r = xalloc[(ks, rt)]
        return f"  ds_read_b128 v[{r}:{r+3}], v{12 + ks%2} offset:{((ks//2)%3)*8192 + rt*2048}"
    plan = {g: [] for g in range(-PF, NG)}
    for gi in range(NG): plan[gi-PF].append(('w', gi))
    cnt = {}
    for (gi, ks, rt) in xorder:
        j = cnt.get(gi, 0); cnt[gi] = j + 1
        plan[gi - PF + min(j, PF-2) if gi >= PF else -PF].append(('x', ks, rt))
    issued = []; barrier_done = 0; stored = set()
    tmpc = [0]
    def chunk_of(it): return (groups[it[1]][0] if it[0] == 'w' else it[1]) // 2
    def do_issue(pos):
        nonlocal barrier_done
        for it in plan[pos]:
            c = chunk_of(it)
            while barrier_done <= c:
                px = {0: 5 if opt.get('pre') else 0, 1: NPRE}.get(barrier_done, 0)
                if XC: e(f"  s_waitcnt vmcnt({(8 if barrier_done + 1 < NCH else 0) + px})")
                elif barrier_done < 2: e(f"  s_waitcnt vmcnt({8 - 8*barrier_done + px})")
                e("  s_barrier"); barrier_done += 1
                if barrier_done in ((1,2,5) if not opt.get("bst") else (2,3,4,5,6,7,8,9)): stamp()
            if not opt.get('nords') and opt.get('nord') != it[0]: e(wread(it[1]) if it[0] == 'w' else xread(it[1], it[2]))
            issued.append(it)
    store_q = []
    def store_items(rts):
        its = []
        for rt in rts:
            for r in range(4): its.append(('m', rt, r))
            its.append(('t', rt, 0))
        return its
    def emit_store(it, tmp):
        kind, rt, r = it
        if kind == 'm':
            for p in range(4):
                e(f"  v_cvt_pk_bf16_f32 v{tmp+p}, v{acc(rt,2*p)+r}, v{acc(rt,2*p+1)+r}")
            e(f"  s_mov_b32 s36, {(16*rt + r)*9216}")
            if not opt.get('nostore'): e(f"  buffer_store_dwordx4 v[{tmp}:{tmp+3}], v6, s[28:31], s36 offen {sf}")
        else:
            a0 = acc(rt, 8)
            e(f"  v_cvt_pk_bf16_f32 v{tmp}, v{a0}, v{a0+1}")
            e(f"  v_cvt_pk_bf16_f32 v{tmp+1}, v{a0+2}, v{a0+3}")
            e(f"  s_mov_b32 s36, {16*rt*9216}")
            if not opt.get('nostore'): e(f"  buffer_store_dwordx2 v[{tmp}:{tmp+1}], v7, s[28:31], s36 offen offset:256 {sf}")
    for pos in range(-PF, 0): do_issue(pos)
    first_h2 = 1 + max(i for i, g in enumerate(groups) if 0 in g[2]) if TAIL else None
    for gi, (ks, ct, rts) in enumerate(groups):
        need = [('w', gi)] + [('x', ks, rt) for rt in rts]
        last = max(issued.index(n) for n in need)
        n_after = len(issued) - 1 - last
        assert n_after <= 15
        e(f"  s_waitcnt lgkmcnt({n_after})")
        w = WR + (gi % NW) * 4
        pl = plan[gi]
        for ri, rt in enumerate(rts):
            a = acc(rt, ct); x = xalloc[(ks, rt)]
            cin = "0" if ks == 0 else f"v[{a}:{a+3}]"
            A, B = (x, w) if ct < 8 else (w, x)
            if opt.get('m32') and ct < 8:
                if ri < 2:
                    a = ACC + (2*(ct%4) + ri)*16; x = xalloc[(ks, ri + 2*(ct//4))]
                    cin = "0" if (ks == 0 and ct < 4) else f"v[{a}:{a+15}]"
                    e(f"  v_mfma_f32_32x32x16_bf16 v[{a}:{a+15}], v[{x}:{x+3}], v[{w}:{w+3}], {cin}")
                if ri == 2 and ct < 4 and opt.get('m32') == 2: e(f"  ds_read_b128 v[{68+0}:{68+3}], v12 offset:{ct*2048}"); issued.append(('z', ks, ct))
            elif not opt.get('nomfma'):
                e(f"  v_mfma_f32_16x16x32_bf16 v[{a}:{a+3}], v[{A}:{A+3}], v[{B}:{B+3}], {cin}")
            plan[gi] = pl[ri:ri+1] if ri + 1 < len(rts) else pl[ri:]
            do_issue(gi)
        if XC and ks // 2 + 2 < NCH and gi % 18 < 13 and (gi % 18) % 3 != 2 and gi % 18 != 12:
            xi = (gi % 18) - (gi % 18) // 3
            for l in xdma(ks // 2 + 2, xi): e(l)
        if TAIL and gi == first_h2 + 1: store_q = store_items((0, 1))
        if store_q and gi % opt.get('sgap', 2) == 0:
            it = store_q.pop(0)
            kind, rt, r = it
            emit_store(it, 68 + 4 * (tmpc[0] % 3)); tmpc[0] += 1
    e("  s_nop 7"); e("  s_nop 7"); e("  s_nop 3"); stamp()
    rest = store_q + store_items((2, 3) if TAIL else (0, 1, 2, 3))
    tmp = 20
    for it in rest:
        emit_store(it, tmp); tmp += 4
        assert tmp <= 112
    stamp(); dump()
    e("  s_endpgm")

    e("L_producer:")
    if opt.get('noprod'): e("  s_endpgm")
    if pprio: e(f"  s_setprio {pprio}")
    QR = 20; RES = QR + QD*36; PK = RES + 36
    assert PK + 16 <= 256
    def qreg(c, j): return QR + (c % QD)*36 + j*4
    e("  s_sub_u32 s3, s3, 4")
    e("  v_lshrrev_b32 v5, 5, v2")
    e("  v_and_b32 v6, 31, v2")
    e("  s_lshl_b32 s32, s3, 1")
    e("  v_add_u32 v7, s32, v5")
    e("  s_mov_b32 s34, 147456")
    e("  v_mul_lo_u32 v8, v7, s34")
    e("  s_lshl_b32 s33, s14, 2")
    e("  v_lshl_add_u32 v8, v6, 4, v8")
    e("  v_add_u32 v8, s33, v8")
    e("  v_lshrrev_b32 v9, 2, v2")
    e("  s_lshl_b32 s35, s3, 4")
    e("  v_add_u32 v9, s35, v9")
    e("  s_movk_i32 s34, 18432")
    e("  v_mul_lo_u32 v10, v9, s34")
    e("  v_and_b32 v11, 3, v2")
    e("  v_lshl_add_u32 v10, v11, 4, v10")
    e("  v_add_u32 v10, s33, v10")
    vm = []
    for j in range(8): e(f"  s_mov_b32 s{48+j}, {j*18432}")
    def qload(c, j):
        r = qreg(c, j); vm.append(('q', c))
        if j == 8:
            return [f"  buffer_load_dwordx4 v[{r}:{r+3}], v10, s[20:23], 0 offen offset:512 {qf}",
                    f"  v_add_u32 v8, {64*18432}, v8", f"  v_add_u32 v10, {64*18432}, v10"]
        return [f"  buffer_load_dwordx4 v[{r}:{r+3}], v8, s[20:23], s{48+j} offen {qf}"]
    def vwait(key):
        if key not in vm: return
        last = max(i for i, k in enumerate(vm) if k == key)
        e(f"  s_waitcnt vmcnt({min(63, len(vm)-1-last)})")
    for j in range(9):
        for l in qload(0, j): e(l)
    Q1E = opt.get('q1e', 0)
    if Q1E:
        for j in range(9):
            for l in qload(1, j): e(l)
    stamp()
    e("  v_lshlrev_b32 v12, 2, v6")
    e("  v_and_b32 v1, 1, v6")
    e("  v_lshrrev_b32 v13, 1, v6")
    e("  v_lshlrev_b32 v16, 2, v1")
    e("  v_xor_b32 v13, v13, v16")
    e("  v_lshlrev_b32 v13, 4, v13")
    e("  v_lshl_add_u32 v13, v1, 12, v13")
    e("  v_lshrrev_b32 v1, 2, v7")
    e(f"  s_movk_i32 s34, {WK}")
    e("  v_mul_lo_u32 v1, v1, s34")
    e("  v_add_u32 v13, v13, v1")
    e("  v_and_b32 v1, 3, v7")
    e("  v_lshl_add_u32 v13, v1, 8, v13")
    e(f"  v_add_u32 v16, {WBASE}, v13")
    e("  v_lshrrev_b32 v1, 5, v9")
    e("  v_mul_lo_u32 v1, v1, s34")
    e(f"  v_add_u32 v13, {WBASE + 8192}, v1")
    e("  v_bfe_u32 v1, v9, 3, 2")
    e("  v_lshl_add_u32 v13, v1, 8, v13")
    e("  v_lshl_add_u32 v13, v11, 6, v13")
    e("  v_and_b32 v1, 7, v9")
    e("  v_lshl_add_u32 v17, v1, 1, v13")
    stamp()
    e("  s_barrier")
    stamp()
    if not XC: e("  v_add_u32 v14, 256, v14"); e("  v_add_u32 v15, 256, v15")
    VP = opt.get('vp', 0); TB = PK + 16; RAW = TB + 32
    if VP:
        assert RAW + 32 <= 256 and XC
        for i, cst in enumerate((0x08080808, 0x18181818, 0x05010400, 0x07030602, 0x05040100, 0x07060302)):
            e(f"  s_mov_b32 s{66+i}, {cst:#x}")
        e("  v_add_u32 v13, 128, v12")
        for q in range(16):
            e(f"  ds_read2st64_b32 v[{RAW+2*q}:{RAW+2*q+1}], v{12 + q%2} offset0:{q//2} offset1:{q//2+8}")
    def tabL(t, i): return TB + t*8 + i
    def tabH(t, i): return TB + t*8 + 4 + i
    def build_tables(e=e):
        for t in range(VP):
            pp, sb = t // 2, t % 2
            for i in range(4):
                r = [RAW + 2*(4*i + u) + pp for u in range(4)]
                a, b = PK + 2*(i % 2), PK + 2*(i % 2) + 1
                e(f"  v_perm_b32 v{a}, v{r[1]}, v{r[0]}, s{68+sb}")
                e(f"  v_perm_b32 v{b}, v{r[3]}, v{r[2]}, s{68+sb}")
                e(f"  v_perm_b32 v{tabL(t,i)}, v{b}, v{a}, s70")
                e(f"  v_perm_b32 v{tabH(t,i)}, v{b}, v{a}, s71")
    D16 = opt.get('d16', 0); PST = (3, 4)
    vq = []
    for c in range(-1, NCH):
        so = (c % NSLOT) * WSLOT
        if not XC and c >= 1 and c + 1 < NCH: vq += [('x', c + 1, i) for i in range(8)]
        if c == -1: vq += [('q', cc, j) for cc in range(1 + Q1E, LQ) for j in range(9)]
        if c + 1 + LQ < NCH: vq += [('q', c + 1 + LQ, j) for j in range(9)]
        def vissue(n):
            for _ in range(n):
                if not vq: return
                k, cc, i = vq.pop(0)
                if k == 'x':
                    for l in xdma(cc, i): e(l)
                    vm.append(('x', cc))
                else:
                    for l in qload(cc, i): e(l)
        early = c >= 0 and c < opt.get('early', 1)
        def bar():
            vwait(('x', c))
            if c in PST: stamp()
            e("  s_barrier")
            if c in PST: stamp()
        def pack(t):
            for jj in range(4):
                lo = RES + t*9 + 2*jj
                e(f"  v_lshl_or_b32 v{PK + t*4 + jj}, v{lo+1}, 16, v{lo}")
            e(f"  ds_write_b128 v16, v[{PK+t*4}:{PK+t*4+3}] offset:{so + t*1024}")
            e(f"  ds_write_b16 v17, v{RES+t*9+8} offset:{so + t*16}")
        def look(t):
            DIST = opt.get('dist', 2)
            for i in range(9 + DIST):
                if i < 9:
                    r = qreg(c + 1, i) + t
                    e(f"  v_lshl_add_u32 v{r}, v{r}, 7, v12")
                if i >= DIST:
                    j = i - DIST; r = qreg(c + 1, j) + t
                    of = (4096 if j == 8 else 0) + (t//2)*2048 + (t%2)*2
                    e(f"  ds_read_u16 v{RES + t*9 + j}, v{r} offset:{of}")
                if i in VPOS: vissue(1)
        VPOS = (3, 7) if XC else (1, 4, 7, 9)
        if c == -1: VPOS = (2, 5, 8)[:opt.get('vp0', 3)]
        if c == 0: VPOS = (1, 4, 7, 9)
        def lookups(items, vpos=()):
            DIST = opt.get('dist', 2)
            for i in range(len(items) + DIST):
                if i < len(items):
                    t, j = items[i]; r = qreg(c + 1, j) + t
                    e(f"  v_lshl_add_u32 v{r}, v{r}, 7, v12")
                if i >= DIST:
                    t, j = items[i - DIST]; r = qreg(c + 1, j) + t
                    of = (4096 if j == 8 else 0) + (t//2)*2048 + (t%2)*2
                    e(f"  ds_read_u16 v{RES + t*9 + j}, v{r} offset:{of}")
                if i in vpos: vissue(1)
        LI = [(t, 8) for t in range(4)] + [(t, j) for t in range(VP, 4) for j in range(8)]
        LATE = opt.get('late', 0)
        if LATE and c == -1:
            assert VP == 4
            bt = []; build_tables(bt.append)
            vwait(('q', 0)); e("  s_waitcnt lgkmcnt(0)")
            n0 = len(o)
            for t in range(4): look(t)
            seg = o[n0:]; del o[n0:]
            for l in seg:
                e(l)
                if 'ds_read_u16' in l:
                    for _ in range(2):
                        if bt: e(bt.pop(0))
            assert not bt
        elif LATE and c == 0:
            for t in range(4):
                e(f"  s_waitcnt lgkmcnt({min(15, (3-t)*9 + 2*t)})"); pack(t)
            if LATE == 2: vissue(99)
            e("  s_waitcnt lgkmcnt(0)"); bar()
            vissue(99)
        elif LATE:
            X = RAW; TM = RAW + 8
            vwait(('q', c))
            for t in range(4):
                r = qreg(c, 8) + t
                e(f"  v_lshl_add_u32 v{r}, v{r}, 7, v12")
            for t in range(4):
                r = qreg(c, 8) + t
                e(f"  ds_read_u16 v{RES + t*9 + 8}, v{r} offset:{4096 + (t//2)*2048 + (t%2)*2}")
            for t in range(4):
                for hh in range(2):
                    a = [qreg(c, 4*hh + u) + t for u in range(4)]; x = X + 2*t + hh; y = TM + (2*t + hh) % 4
                    e(f"  v_lshl_or_b32 v{x}, v{a[1]}, 8, v{a[0]}")
                    e(f"  v_lshl_or_b32 v{y}, v{a[3]}, 8, v{a[2]}")
                    e(f"  v_lshl_or_b32 v{x}, v{y}, 16, v{x}")
            body = []
            for t in range(4):
                seq = []
                for hh in range(2):
                    x = X + 2*t + hh; b = TM + 4 + hh*5; g = b; la, lb, ha, hb = b+1, b+2, b+3, b+4
                    seq.append([
                        f"  v_and_b32 v{g}, s66, v{x}",
                        f"  v_lshl_or_b32 v{x}, v{g}, 1, v{x}",
                        f"  v_xor_b32 v{g}, s67, v{x}",
                        f"  v_perm_b32 v{la}, v{tabL(t,1)}, v{tabL(t,0)}, v{x}",
                        f"  v_perm_b32 v{ha}, v{tabH(t,1)}, v{tabH(t,0)}, v{x}",
                        f"  v_perm_b32 v{lb}, v{tabL(t,3)}, v{tabL(t,2)}, v{g}",
                        f"  v_perm_b32 v{hb}, v{tabH(t,3)}, v{tabH(t,2)}, v{g}",
                        f"  v_and_b32 v{la}, v{la}, v{lb}",
                        f"  v_and_b32 v{ha}, v{ha}, v{hb}",
                        f"  v_perm_b32 v{PK + t*4 + 2*hh}, v{ha}, v{la}, s68",
                        f"  v_perm_b32 v{PK + t*4 + 2*hh + 1}, v{ha}, v{la}, s69"])
                for i in range(11): body += [seq[0][i], seq[1][i]]
                body.append(f"  ds_write_b128 v16, v[{PK+t*4}:{PK+t*4+3}] offset:{so + t*1024}")
                if t == 1:
                    body.append("  s_waitcnt lgkmcnt(2)")
                    body += [f"  ds_write_b16 v17, v{RES+u*9+8} offset:{so + u*16}" for u in range(4)]
            VL = opt.get('vl', 9)
            gap = max(1, len(body) // VL) if VL else 999
            for i, l in enumerate(body):
                e(l)
                if i % gap == gap - 1: vissue(1)
            if opt.get('vb', 0): vissue(99)
            e("  s_waitcnt lgkmcnt(0)"); bar()
            vissue(99)
        elif VP and c == 0:
            for t in range(4):
                e(f"  s_waitcnt lgkmcnt({min(15, (3-t)*9 + 2*t)})"); pack(t)
            e("  s_waitcnt lgkmcnt(0)"); bar()
            build_tables()
            while any(k == 'q' and cc == c + 1 for k, cc, _ in vq): vissue(1)
            vwait(('q', c + 1))
            lookups(LI, range(0, 40, 2))
            vissue(99)
        elif VP and c >= 1:
            X = RAW; TM = RAW + 8
            body = []
            for t in range(VP):
                for hh in range(2):
                    a = [qreg(c, 4*hh + u) + t for u in range(4)]; x = X + 2*t + hh; y = TM + (2*t + hh) % 4
                    e(f"  v_lshl_or_b32 v{x}, v{a[1]}, 8, v{a[0]}")
                    e(f"  v_lshl_or_b32 v{y}, v{a[3]}, 8, v{a[2]}")
                    e(f"  v_lshl_or_b32 v{x}, v{y}, 16, v{x}")
            e("  s_waitcnt lgkmcnt(0)")
            for t in range(VP, 4):
                for jj in range(4):
                    lo = RES + t*9 + 2*jj
                    e(f"  v_lshl_or_b32 v{PK + t*4 + jj}, v{lo+1}, 16, v{lo}")
                e(f"  ds_write_b128 v16, v[{PK+t*4}:{PK+t*4+3}] offset:{so + t*1024}")
            for t in range(4):
                e(f"  ds_write_b16 v17, v{RES+t*9+8} offset:{so + t*16}")
            for t in range(VP):
                seq = []
                for hh in range(2):
                    x = X + 2*t + hh; b = TM + 4 + hh*5; g = b; la, lb, ha, hb = b+1, b+2, b+3, b+4
                    seq.append([
                        f"  v_and_b32 v{g}, s66, v{x}",
                        f"  v_lshl_or_b32 v{x}, v{g}, 1, v{x}",
                        f"  v_xor_b32 v{g}, s67, v{x}",
                        f"  v_perm_b32 v{la}, v{tabL(t,1)}, v{tabL(t,0)}, v{x}",
                        f"  v_perm_b32 v{ha}, v{tabH(t,1)}, v{tabH(t,0)}, v{x}",
                        f"  v_perm_b32 v{lb}, v{tabL(t,3)}, v{tabL(t,2)}, v{g}",
                        f"  v_perm_b32 v{hb}, v{tabH(t,3)}, v{tabH(t,2)}, v{g}",
                        f"  v_and_b32 v{la}, v{la}, v{lb}",
                        f"  v_and_b32 v{ha}, v{ha}, v{hb}",
                        f"  v_perm_b32 v{PK + t*4 + 2*hh}, v{ha}, v{la}, s68",
                        f"  v_perm_b32 v{PK + t*4 + 2*hh + 1}, v{ha}, v{la}, s69"])
                for i in range(11): body += [seq[0][i], seq[1][i]]
                body.append(f"  ds_write_b128 v16, v[{PK+t*4}:{PK+t*4+3}] offset:{so + t*1024}")
            gap = max(1, len(body) // opt.get('vl', 9))
            for i, l in enumerate(body):
                e(l)
                if i % gap == gap - 1: vissue(1)
            if c + 1 < NCH:
                vwait(('q', c + 1))
                n1 = min(len(LI), 12)
                lookups(LI[:n1], range(1, 40, 3))
                e(f"  s_waitcnt lgkmcnt({n1})")
                bar()
                lookups(LI[n1:], range(1, 40, 3))
                vissue(99)
            else:
                e("  s_waitcnt lgkmcnt(0)"); bar()
        elif c == -1 or early or c + 1 == NCH:
            if c >= 0:
                for t in range(4):
                    e(f"  s_waitcnt lgkmcnt({min(15, (3-t)*9 + 2*t)})"); pack(t)
                e("  s_waitcnt lgkmcnt(0)"); bar()
            if c + 1 < NCH:
                while any(k == 'q' and cc == c + 1 for k, cc, _ in vq): vissue(1)
                vwait(('q', c + 1))
                for t in range(4): look(t)
            if c >= 0: vissue(99)
        elif opt.get('mid', 1):
            for t in range(4):
                e(f"  s_waitcnt lgkmcnt({min(15, (3-t)*9 + 2*t)})"); pack(t)
            vwait(('q', c + 1))
            look(0); look(1)
            e("  s_waitcnt lgkmcnt(15)")
            bar()
            look(2); look(3)
            vissue(99)
        else:
            vwait(('q', c + 1))
            for t in range(4):
                e("  s_waitcnt lgkmcnt(15)"); pack(t); look(t)
            vissue(99)
            e("  s_waitcnt lgkmcnt(9)")
            bar()
    dump()
    e("L_end:")
    e("  s_endpgm")
    e('.section .rodata,"a"'); e(".p2align 6"); e(f".amdhsa_kernel {NAME}_kernel")
    for l in ("next_free_vgpr 256","next_free_sgpr 72","accum_offset 256","group_segment_fixed_size 0","kernarg_size 48","user_sgpr_count 2","user_sgpr_kernarg_segment_ptr 1","system_sgpr_workgroup_id_x 1"): e("  .amdhsa_"+l)
    e(".end_amdhsa_kernel")
    drop = [d for d in opt.get('drop', '').split('+') if d]
    pi = o.index("L_producer:")
    lb = max(i for i, x in enumerate(o) if x and 'v_lshl_add_u32 v17' in x)
    o = [x for i, x in enumerate(o) if not (x and i > lb and any(d in x for d in drop))]
    return "\n".join(x for x in o if x is not None) + "\n"

if __name__ == "__main__":
    opt = {}
    for a in sys.argv[2:]:
        k, v = a.split("=")
        try: v = int(v)
        except ValueError: pass
        opt[k] = v
    open(sys.argv[1], "w").write(gen(opt))
```
